```python
import torch

def _softmax(x, axis=-1):
    return torch.softmax(x, dim=axis)
def _gelu(x):
    return torch.nn.functional.gelu(x, approximate="tanh")
def _silu(x):
    return torch.nn.functional.silu(x)
def _sigmoid(x):
    return torch.sigmoid(x)
def _layernorm(x, axis=-1, eps=1e-5):
    m = x.mean(dim=axis, keepdim=True)
    v = x.var(dim=axis, keepdim=True, unbiased=False)
    return (x - m) / torch.sqrt(v + eps)
def _scatter_add(tgt, idx, src, axis=0):
    return tgt.clone().index_add_(axis, idx, src)
def _segment_sum(src, seg, n):
    out = torch.zeros((n,) + src.shape[1:], dtype=src.dtype)
    return out.index_add_(0, seg, src)
def _pad(x, pw):
    flat = tuple(v for pair in reversed(pw) for v in pair)
    return torch.nn.functional.pad(x, flat)

kernel_name = 'gated_mix__sliding_block__dense_activation_silu__prompt'

def setup_inputs():

    _w = (lambda a: (lambda t: t.to(torch.bfloat16) if t.is_floating_point() else t)(torch.as_tensor(a)))
    def _A_setup():
        B, S, D = 1, 2048, 640
        return {
            "x": _w((lambda *s: torch.randn(*s, dtype=torch.bfloat16) * 0.2)(B, S, D)),
            "wqkv": _w((lambda *s: torch.randn(*s, dtype=torch.bfloat16) * 0.2)(D, 3 * D)),
            "wo": _w((lambda *s: torch.randn(*s, dtype=torch.bfloat16) * 0.2)(D, D)),
        }
    _A_in = _A_setup()

    def _B_setup():
        B, S, D, F = 1, 2048, 640, 1536
        return {
            "x": _w((lambda *s: torch.randn(*s, dtype=torch.bfloat16) * 0.2)(B, S, D)),
            "w1": _w((lambda *s: torch.randn(*s, dtype=torch.bfloat16) * 3.2)(D, F) * (D ** -0.5)),
            "w2": _w((lambda *s: torch.randn(*s, dtype=torch.bfloat16) * 3.2)(F, D) * (F ** -0.5)),
        }
    _B_in = _B_setup()

    return {
        "A_x": _A_in["x"],
        "A_wqkv": _A_in["wqkv"],
        "A_wo": _A_in["wo"],
        "B_x": _B_in["x"],
        "B_w1": _B_in["w1"],
        "B_w2": _B_in["w2"],
        "gate_w": _w((lambda *s: torch.randn(*s, dtype=torch.bfloat16) * 0.2)(640) * 16.0),
    }

def reference(A_x, A_wqkv, A_wo, B_x, B_w1, B_w2, gate_w):
    def _A_ref(x, wqkv, wo):
        B, S, D = x.shape
        H = 32; Dh = D // H; W = 256
        qkv = (lambda x, *d: x.permute(*d))((x @ wqkv).reshape(B, S, 3, H, Dh), 2, 0, 3, 1, 4)
        q, k, v = qkv[0], qkv[1], qkv[2]
        scores = torch.einsum("bhqd,bhkd->bhqk", q, k) * (Dh ** -0.5)
        idx = torch.arange(S)
        mask = (idx[:, None] - idx[None, :] >= 0) & (idx[:, None] - idx[None, :] < W)
        scores = torch.where(mask[None, None], scores, -1e9)
        p = _softmax(scores, axis=-1)
        o = torch.einsum("bhqk,bhkd->bhqd", p, v)
        return (lambda x, *d: x.permute(*d))(o, 0, 2, 1, 3).reshape(B, S, D) @ wo

    def _B_ref(x, w1, w2):
        h = torch.einsum("bsd,df->bsf", x, w1)
        h = _silu(h)
        out = torch.einsum("bsf,fd->bsd", h, w2)
        return out

    x = A_x
    g = _sigmoid((x * gate_w).sum(-1, keepdims=True))
    a = _A_ref(x, A_wqkv, A_wo)
    b = _B_ref(x, B_w1, B_w2)
    return g * a + (1 - g) * b
```

```python
import re

class Asm:
    def __init__(self):
        self.lines = []
    def __call__(self, s):
        for l in s.split('\n'):
            l = l.strip()
            if l:
                self.lines.append(l)
    def ext(self, ls):
        for l in ls:
            self(l)
    def label(self, n):
        self.lines.append(n + ':')
    def text(self):
        out = []
        for l in self.lines:
            if l.endswith(':') or l.startswith('.') or l.startswith(';'):
                out.append(l)
            else:
                out.append('  ' + l)
        return '\n'.join(out) + '\n'

def vr(b, n=1, p='v'):
    return f'{p}{b}' if n == 1 else f'{p}[{b}:{b+n-1}]'
def ar(b, n=1):
    return vr(b, n, 'a')
def sr(b, n=1):
    return vr(b, n, 's')

def interleave(main, fill, slots=None):
    out = []
    n = len(main)
    m = len(fill)
    k = 0
    for i, x in enumerate(main):
        out += x if isinstance(x, list) else [x]
        tgt = (m * (i + 1) + n - 1) // n if slots is None else min(m, sum(slots[:i + 1]))
        while k < tgt:
            f = fill[k]
            out += f if isinstance(f, list) else [f]
            k += 1
    while k < m:
        f = fill[k]
        out += f if isinstance(f, list) else [f]
        k += 1
    return out

_REG = re.compile(r'^-?\|?(?:abs\()?([vas])(?:(\d+)|\[(\d+):(\d+)\])\)?\|?$')
def regs(tok):
    tok = tok.strip()
    if tok in ('vcc',): return {('s', 'vcc')}
    if tok in ('exec',): return {('s', 'exec')}
    if tok in ('m0',): return {('s', 'm0')}
    m = _REG.match(tok)
    if not m: return set()
    p = m.group(1)
    if m.group(2) is not None:
        return {(p, int(m.group(2)))}
    return {(p, i) for i in range(int(m.group(3)), int(m.group(4)) + 1)}

TRANS = ('v_exp_f32', 'v_rcp_f32', 'v_log_f32', 'v_rsq_f32', 'v_sqrt_f32')
class I:
    def __init__(self, line):
        self.line = line
        l = line.split(';')[0].strip()
        parts = l.split(None, 1)
        self.op = parts[0]
        rest = parts[1] if len(parts) > 1 else ''
        ops = [o.strip() for o in rest.split(',')] if rest else []
        self.mods = ''
        if ops:
            last = ops[-1].split(None, 1)
        mm = re.search(r'\s(offen|offset:|op_sel|neg_|sc0|sc1|nt\b|lds\b|bitop3|row_|quad_|clamp|mul:|div:|glc)', ' ' + rest)
        if mm:
            cut = mm.start()
            self.mods = (' ' + rest)[cut:]
            rest = (' ' + rest)[:cut]
        ops = [o.strip() for o in rest.split(',')] if rest.strip() else []
        self.ops = ops
        op = self.op
        R = lambda i: regs(ops[i]) if i < len(ops) else set()
        allr = lambda a: set().union(*[regs(o) for o in ops[a:]]) if len(ops) > a else set()
        self.kind = 'other'; self.w = set(); self.r = set()
        self.mf = None
        if op.startswith('v_mfma'):
            self.kind = 'mfma'; self.w = R(0); self.a = R(1); self.b = R(2); self.c = R(3); self.r = self.a | self.b | self.c
            self.passes = 8 if '32x32' in op else 4
        elif op.startswith('v_'):
            self.kind = 'valu'; self.w = R(0); self.r = allr(1)
            if op.startswith(('v_fmac', 'v_dot2c', 'v_permlane', 'v_writelane')): self.r |= R(0)
            if op.startswith('v_permlane'): self.w |= R(1)
            if op.startswith(('v_add_co', 'v_sub_co', 'v_addc_co')): self.w |= R(1); self.r = allr(2)
            if op.startswith('v_cmpx'): self.w |= {('s', 'exec')}
        elif op.startswith(('buffer_load', 'global_load')):
            self.kind = 'vmem'
            if ' lds' in self.mods:
                self.r = allr(0) | {('s', 'm0')}; self.dma = True
            else:
                self.w = R(0); self.r = allr(1)
        elif op.startswith(('buffer_store', 'buffer_atomic')):
            self.kind = 'vmem'; self.r = allr(0); self.data = R(0)
            if 'atomic' in op and 'sc0' in self.mods: self.w = R(0)
        elif op.startswith(('global_store',)):
            self.kind = 'vmem'; self.r = allr(0); self.data = R(1)
        elif op.startswith('buffer_'):
            self.kind = 'vmem'
        elif op.startswith('ds_read') or op.startswith('ds_bpermute') or op.startswith('ds_swizzle'):
            self.kind = 'ds'; self.w = R(0); self.r = allr(1)
        elif op.startswith('ds_'):
            self.kind = 'ds'; self.r = allr(0)
        elif op.startswith(('s_load', 's_memtime', 's_memrealtime', 's_buffer_load')):
            self.kind = 'smem'; self.w = R(0); self.r = allr(1)
        elif op in ('s_waitcnt', 's_nop', 's_barrier', 's_endpgm', 's_sleep', 's_setprio') or op.startswith(('s_cbranch', 's_branch')):
            self.kind = 'ctl'
        elif op.startswith('s_cmp') or op.startswith('s_bitcmp'):
            self.kind = 'salu'; self.r = allr(0)
        elif op.startswith('s_'):
            self.kind = 'salu'; self.w = R(0); self.r = allr(1)
            if 'saveexec' in op: self.w |= {('s', 'exec')}
            if op.startswith(('s_addk', 's_mulk')): self.r |= R(0)
        self.states = 1
        if op == 's_nop': self.states = int(ops[0], 0) + 1

def check(lines, name=''):
    ins = [I(l) for l in lines if not (l.endswith(':') or l.startswith('.') or l.startswith(';'))]
    probs = []
    vm = []; lg = []
    for idx, x in enumerate(ins):
        if x.op == 's_waitcnt':
            m = re.search(r'vmcnt\((\d+)\)', x.line)
            if m:
                n = int(m.group(1)); assert n <= 63, x.line
                while len(vm) > n: vm.pop(0)
            m = re.search(r'lgkmcnt\((\d+)\)', x.line)
            if m:
                n = int(m.group(1)); assert n <= 15, x.line
                if n > 0 and any(k == 'smem' for k, _, _ in lg): probs.append(f'{name}[{idx}] counted lgkmcnt with smem outstanding: {x.line}')
                while len(lg) > n: lg.pop(0)
        if x.op == 's_endpgm':
            vm = []; lg = []
        touched = x.r | x.w
        for q, qn in ((vm, 'vm'), (lg, 'lgkm')):
            for k, w, src in q:
                if w & touched:
                    probs.append(f'{name}[{idx}] touches pending {qn} dest: {x.line}   <- {src}')
        if x.kind == 'vmem':
            vm.append((x.kind, x.w, x.line))
            if len(vm) > 63: probs.append(f'{name}[{idx}] more than 63 vmem outstanding: {x.line}')
        if x.kind in ('ds', 'smem'):
            lg.append((x.kind, x.w, x.line))
        dist = 0
        for j in range(idx - 1, max(-1, idx - 24), -1):
            p = ins[j]
            need = 0; why = ''
            vw = {r for r in p.w if r[0] in 'va'}; sw = {r for r in p.w if r[0] == 's'}
            if p.kind == 'valu':
                if x.kind == 'mfma' and vw & x.r: need, why = 2, 'valu->mfma'
                if x.op.startswith('v_permlane') and vw & x.r: need, why = 2, 'valu->permlane'
                if ('row_' in x.mods or 'quad_' in x.mods) and vw & x.r: need, why = 2, 'valu->dpp'
                if x.op.startswith(('v_readfirstlane', 'v_readlane')) and vw & x.r: need, why = max(need, 1), 'valu->readlane'
                if p.op.startswith(TRANS) and x.kind == 'valu' and not x.op.startswith(TRANS) and vw & x.r: need, why = max(need, 1), 'trans->valu'
                if x.kind == 'vmem' and sw & x.r: need, why = 5, 'valu sgpr->vmem'
                if x.kind == 'valu' and sw & x.r: need, why = max(need, 2), 'valu sgpr->valu'
                if ('s', 'exec') in sw and x.kind == 'mfma': need, why = 4, 'valu exec->mfma'
            if p.kind == 'mfma':
                big = {8: 12, 4: 8}[p.passes]; ov = {8: 10, 4: 6}[p.passes]; war = {8: 7, 4: 3}[p.passes]
                if x.kind == 'mfma':
                    if p.w & (x.a | x.b): need, why = big, 'mfma D->mfma AB'
                    elif p.w & x.c and not (p.w == x.c and p.passes == x.passes): need, why = ov, 'mfma D->mfma C partial'
                    elif p.w & x.w and not (p.w == x.c and p.passes == x.passes) : need, why = ov, 'mfma D->mfma D waw'
                elif x.kind in ('valu', 'vmem', 'ds'):
                    if p.w & (x.r | x.w): need, why = big, 'mfma D->valu/mem'
                    elif x.kind == 'valu' and p.c & x.w: need, why = war, 'mfma C war'
            if p.kind == 'salu' and ('s', 'm0') in p.w and getattr(x, 'dma', False): need, why = 1, 'm0->dma'
            if p.kind == 'vmem' and hasattr(p, 'data') and len(p.data) >= 3 and p.data & x.w:
                if x.kind == 'valu': need, why = 2, 'store data war'
                else: need, why = 1, 'store data war'
            if need > dist:
                probs.append(f'{name}[{idx}] hazard {why}: need {need} have {dist}: {p.line}  ->  {x.line}')
            dist += p.states
            if dist >= 20: break
    return probs

def resolve(lines):
    out = []
    vm = []; lg = []
    def emit_wait(nv, nl):
        nonlocal vm, lg
        parts = []
        if nv is not None and nv < len(vm):
            vm = vm[len(vm) - nv:] if nv else []
            parts.append(('vmcnt', nv))
        if nl is not None and nl < len(lg):
            if any(k == 'smem' for k, _, _ in lg): nl = 0
            nl = min(nl, 15)
            lg = lg[len(lg) - nl:] if nl else []
            parts.append(('lgkmcnt', nl))
        if not parts: return
        if out and out[-1].startswith('s_waitcnt'):
            prev = dict((a, int(b)) for a, b in re.findall(r'(vmcnt|lgkmcnt)\((\d+)\)', out[-1]))
            for a, b in parts: prev[a] = min(prev.get(a, 99), b)
            out[-1] = 's_waitcnt ' + ' '.join(f'{a}({b})' for a, b in prev.items())
        else:
            out.append('s_waitcnt ' + ' '.join(f'{a}({b})' for a, b in parts))
    for l in lines:
        if l.endswith(':') or l.startswith('.') or l.startswith(';'):
            out.append(l); continue
        if l.startswith('WAITVM'):
            tag = '@' + l.split()[1]
            idx = [i for i, (k, w, s) in enumerate(vm) if tag in s.split()]
            if idx: emit_wait(len(vm) - 1 - idx[-1], None)
            continue
        if l.startswith('WAITLG'):
            t = l.split()
            if len(t) == 1: emit_wait(None, 0); continue
            tag = '@' + t[1]
            idx = [i for i, (k, w, s) in enumerate(lg) if tag in s.split()]
            if idx: emit_wait(None, len(lg) - 1 - idx[-1])
            continue
        if l == 'WAITALL':
            out.append('s_waitcnt vmcnt(0) lgkmcnt(0)'); vm = []; lg = []; continue
        if l == 'RESET':
            vm = []; lg = []; continue
        x = I(l)
        if x.op == 's_waitcnt':
            m = re.search(r'vmcnt\((\d+)\)', l)
            if m and int(m.group(1)) < len(vm): vm = vm[len(vm) - int(m.group(1)):] if int(m.group(1)) else []
            m = re.search(r'lgkmcnt\((\d+)\)', l)
            if m and int(m.group(1)) < len(lg): lg = lg[len(lg) - int(m.group(1)):] if int(m.group(1)) else []
            out.append(l); continue
        touched = x.r | x.w
        nv = nl = None
        idx = [i for i, (k, w, s) in enumerate(vm) if w & touched]
        if idx: nv = len(vm) - 1 - idx[-1]
        idx = [i for i, (k, w, s) in enumerate(lg) if w & touched]
        if idx: nl = len(lg) - 1 - idx[-1]
        if x.kind == 'vmem' and len(vm) >= 63 and (nv is None or nv > 62): nv = 62
        if x.kind == 'ds' and len(lg) >= 15 and (nl is None or nl > 14): nl = 14
        emit_wait(nv, nl)
        out.append(l)
        if x.kind == 'vmem': vm.append((x.kind, x.w, l))
        if x.kind in ('ds', 'smem'): lg.append((x.kind, x.w, l))
        if x.op == 's_endpgm': vm = []; lg = []
    return out

def pad_hazards(lines):
    lines = list(lines)
    for _ in range(10000):
        pr = [p for p in check(lines) if 'hazard' in p]
        if not pr: return lines
        real = [i for i, l in enumerate(lines) if not (l.endswith(':') or l.startswith('.') or l.startswith(';'))]
        need = {}
        for p in pr:
            m = re.match(r'\[(\d+)\] hazard .*?: need (\d+) have (\d+)', p)
            i = int(m.group(1)); need[i] = max(need.get(i, 0), int(m.group(2)) - int(m.group(3)))
        last = None
        todo = []
        for i in sorted(need):
            if last is not None and i - last < 24: continue
            todo.append(i); last = i
        for i in reversed(todo):
            lines.insert(real[i], f's_nop {need[i]-1}')
    raise RuntimeError('pad_hazards did not converge')
```

```python
import sys, math, struct
from asmlib import *

NAME = 'gated_mix__sliding_block__dense_activation_silu__prompt'
def f32(x): return '0x%08x' % struct.unpack('<I', struct.pack('<f', x))[0]
LOG2E = 1.4426950408889634
QSCALE = LOG2E / math.sqrt(20.0)
NEGBIG = f32(-1e30)

QKV_OFF, QKV_SZ = 0, 32 * 240 * 1024
ACT_OFF, TB16 = 0x800000, 272 * 256
ACT_SZ = 128 * TB16
WP_OFF, WP_CS = 0x1100000, 68 * 5 * 1024
WP_SZ = 8 * WP_CS
G_OFF, G_SZ = 0x1400000, 8192
STAMP_OFF = 0x1600000
TB64 = 240 * 1024

sWG, sW, sRB, sCT = 2, 3, 4, 5
pX, pWQ, pWO, pBX, pW1, pW2, pGW, pOUT, pDBG, pWS = 16, 18, 20, 22, 24, 26, 28, 30, 32, 34
rX, rWQ, rW1, rQKV, rACT, rWP, rG, rOUT, rW2, rWO, rGW, rST = 36, 40, 44, 48, 52, 56, 60, 64, 68, 72, 76, 96
S = lambda b: sr(b, 4)
SC = ''

def srd_in(a, r, p, size):
    a(f's_mov_b32 s{r}, s{p}\n s_mov_b32 s{r+1}, s{p+1}\n s_mov_b32 s{r+2}, {size}\n s_mov_b32 s{r+3}, 0x20000')
def srd_ws(a, r, off, size):
    a(f's_add_u32 s{r}, s{pWS}, {off}\n s_addc_u32 s{r+1}, s{pWS+1}, 0\n s_mov_b32 s{r+2}, {size}\n s_mov_b32 s{r+3}, 0x20000')

STAMPS = False
def stamp(a, i):
    if STAMPS: a(f's_memtime s[{80+2*i}:{81+2*i}]')
def stamp_store(a, n, kid):
    if not STAMPS: return
    a(f's_memrealtime s[{80+2*n}:{81+2*n}]')
    a('s_waitcnt lgkmcnt(0)')
    srd_ws(a, rST, STAMP_OFF + kid * 0x20000, 0x20000)
    a(f's_lshl_b32 s6, s{sWG}, 2\n s_add_u32 s6, s6, s{sW}\n s_lshl_b32 s6, s6, 7\n v_mov_b32 v250, s6')
    for i in range(n + 1):
        a(f'v_mov_b32 v252, s{80+2*i}\n v_mov_b32 v253, s{81+2*i}\n buffer_store_dwordx2 v[252:253], v250, {S(rST)}, 0 offen offset:{8*i}\n s_nop 1')

def prologue(a, end):
    a(f's_cmp_ge_u32 s{sWG}, 256\n s_cbranch_scc1 {end}')
    a('s_load_dwordx16 s[16:31], s[0:1], 0\n s_load_dwordx4 s[32:35], s[0:1], 64')
    a(f'v_lshrrev_b32 v2, 6, v0\n v_and_b32 v1, 63, v0\n v_readfirstlane_b32 s{sW}, v2')
    a('v_and_b32 v2, 31, v1\n v_lshrrev_b32 v3, 5, v1')

vXo, vWo, vW1o, vXr, vWr, vW1r, vQst, vHst = 4, 8, 12, 16, 20, 24, 27, 28
ACC1, ACC2, WF, TMP = 64, 128, 176, 208
sW4096, sW3072, sK, sScale = 8, 9, 10, 12
sC4096, sC8192, sC12288 = 14, 15, 11
def w1loc(c):
    if c < 2: return 131072 + c * 12288
    i = (c - 2) // 2
    return ((6 + i) % 4) * 16384 + (65536 if c & 1 else 0)
GWTAB = 131072 + 24576

def dma_x(c):
    o = [f's_add_u32 m0, s{sW4096}, {65536 + (c % 4) * 16384}', f's_mov_b32 s{sK}, {c * 128}']
    return [o + [f'buffer_load_dwordx4 v{vXo}, {S(rX)}, s{sK} offen lds ; @x{c}']] + \
           [f'buffer_load_dwordx4 v{vXo+q}, {S(rX)}, s{sK} offen offset:{1024*q} lds ; @x{c}' for q in range(1, 4)]
def dma_w(c):
    o = [f's_add_u32 m0, s{sW4096}, {(c % 4) * 16384}', f's_mov_b32 s{sK}, {c * 64 * 3840}']
    return [o + [f'buffer_load_dwordx4 v{vWo}, {S(rWQ)}, s{sK} offen lds ; @w{c}']] + \
           [f'buffer_load_dwordx4 v{vWo+q}, {S(rWQ)}, s{sK} offen offset:{1024*q} lds ; @w{c}' for q in range(1, 4)]
def dma_w1(c):
    o = [f's_add_u32 m0, s{sW3072}, {w1loc(c)}', f's_mov_b32 s{sK}, {c * 64 * 3072}']
    return [o + [f'buffer_load_dwordx4 v{vW1o}, {S(rW1)}, s{sK} offen lds ; @u{c}']] + \
           [f'buffer_load_dwordx4 v{vW1o+q}, {S(rW1)}, s{sK} offen offset:{1024*q} lds ; @u{c}' for q in range(1, 3)]
def flat(l):
    o = []
    for x in l: o += flat(x) if isinstance(x, list) else [x]
    return o
def rd_x(g, dst=None):
    c, s = divmod(g, 4)
    return f'ds_read_b128 {dst or ar(4*g, 4)}, v{vXr+s} offset:{(c % 4) * 16384}'
def rd_w(g, j, buf):
    c, s = divmod(g, 4)
    return [f'ds_read_b64_tr_b16 {vr(buf + 2*i, 2)}, v{vWr+j} offset:{(c % 4) * 16384 + (16*s + 4*i) * 256}' for i in range(2)]
def rd_w1(g, j, buf):
    c, s = divmod(g, 4)
    loc = w1loc(c); win = loc // 65536
    return [f'ds_read_b64_tr_b16 {vr(buf + 2*i, 2)}, v{vW1r+win} offset:{loc - win*65536 + (16*s + 4*i) * 192 + 64*j}' for i in range(2)]
def mf32(d, A, B, C): return f'v_mfma_f32_32x32x16_bf16 {vr(d,16)}, {A}, {B}, {C}'

def k1_setup(a):
    a(f's_and_b32 s6, s{sWG}, 7\n s_lshr_b32 s7, s{sWG}, 3')
    a(f's_and_b32 s{sRB}, s6, 1\n s_lshl_b32 s{sRB}, s{sRB}, 3\n s_and_b32 s8, s7, 7\n s_add_u32 s{sRB}, s{sRB}, s8')
    a(f's_lshr_b32 s{sCT}, s6, 1\n s_lshl_b32 s{sCT}, s{sCT}, 2\n s_lshr_b32 s8, s7, 3\n s_add_u32 s{sCT}, s{sCT}, s8')
    a(f's_lshl_b32 s{sW4096}, s{sW}, 12\n s_mul_i32 s{sW3072}, s{sW}, 3072')
    a(f's_lshl_b32 s6, s{sRB}, 7\n s_lshl_b32 s7, s{sW}, 5\n s_add_u32 s6, s6, s7')
    a(f'v_lshrrev_b32 v40, 3, v1\n v_and_b32 v41, 7, v1\n v_lshrrev_b32 v42, 1, v40\n v_xor_b32 v41, v41, v42')
    a(f'v_add_u32 v40, s6, v40\n v_mul_u32_u24 v40, 1280, v40\n v_lshl_add_u32 v{vXo}, v41, 4, v40')
    a(f'v_xor_b32 v{vXo+1}, 64, v{vXo}\n v_add_u32 v{vXo+2}, {2*9216}, v{vXo}\n v_add_u32 v{vXo+3}, {3*9216}, v{vXo+1}\n v_add_u32 v{vXo+1}, 9216, v{vXo+1}')
    a(f's_lshl_b32 s6, s{sW}, 4\n s_lshl_b32 s7, s{sCT}, 8')
    a(f'v_lshrrev_b32 v40, 4, v1\n v_and_b32 v41, 15, v1\n v_lshlrev_b32 v42, 2, v40\n v_xor_b32 v41, v41, v42')
    a(f'v_add_u32 v40, s6, v40\n v_mul_u32_u24 v40, 3840, v40\n v_lshl_add_u32 v40, v41, 4, v40\n v_add_u32 v{vWo}, s7, v40')
    for q in range(1, 4): a(f'v_add_u32 v{vWo+q}, {q*(15360-1024)}, v{vWo}')
def k1_setup2(a):
    a(f's_lshl_b32 s6, s{sW}, 4\n s_mul_i32 s7, s{sCT}, 192')
    for q in range(3):
        a(f'v_add_u32 v40, {64*q}, v1\n v_mul_u32_u24 v41, 43691, v40\n v_lshrrev_b32 v41, 19, v41\n v_mul_u32_u24 v42, 12, v41\n v_sub_u32 v40, v40, v42')
        a(f'v_add_u32 v41, s6, v41\n v_mul_u32_u24 v41, 3072, v41\n v_lshl_add_u32 v40, v40, 4, v41\n v_add_u32 v40, s7, v40\n v_subrev_u32 v{vW1o+q}, {1024*q}, v40')
    a(f'v_bfe_u32 v40, v2, 1, 3\n v_xor_b32 v40, v40, v3\n v_lshlrev_b32 v40, 4, v40\n v_lshl_add_u32 v40, v2, 7, v40')
    a(f's_add_u32 s6, s{sW4096}, 65536\n v_add_u32 v{vXr}, s6, v40')
    for s in range(1, 4): a(f'v_xor_b32 v{vXr+s}, {32*s}, v{vXr}')
    a('v_bfe_u32 v40, v1, 2, 2\n v_lshl_add_u32 v41, v3, 3, v40')
    a('v_bfe_u32 v42, v1, 4, 1\n v_lshlrev_b32 v42, 5, v42\n v_and_b32 v43, 1, v1\n v_lshl_add_u32 v42, v43, 4, v42\n v_bfe_u32 v43, v1, 1, 1\n v_lshl_add_u32 v42, v43, 3, v42')
    a(f'v_lshl_add_u32 v43, v41, 8, v42\n v_lshl_add_u32 v{vWr}, v40, 6, v43')
    for j in range(1, 4): a(f'v_xor_b32 v{vWr+j}, {64*j}, v{vWr}')
    a(f'v_mul_u32_u24 v43, 192, v41\n v_add_u32 v{vW1r}, v43, v42\n v_add_u32 v{vW1r+1}, 0x10000, v{vW1r}\n v_add_u32 v{vW1r+2}, 0x20000, v{vW1r}')
    a(f's_lshl_b32 s6, s{sRB}, 1\n s_lshr_b32 s7, s{sW}, 1\n s_add_u32 s6, s6, s7\n s_mul_i32 s6, s6, {TB64}')
    a(f's_lshl_b32 s7, s{sCT}, 14\n s_add_u32 s6, s6, s7\n s_and_b32 s7, s{sW}, 1\n s_lshl_b32 s7, s7, 9\n s_add_u32 s6, s6, s7')
    a(f's_cmp_eq_u32 s{sCT}, 15\n s_cselect_b32 s6, 0x7ff00000, s6')
    a(f'v_lshlrev_b32 v40, 10, v3\n v_lshl_add_u32 v40, v2, 4, v40\n v_add_u32 v{vQst}, s6, v40')
    a(f's_lshl_b32 s6, s{sRB}, 3\n s_lshl_b32 s7, s{sW}, 1\n s_add_u32 s6, s6, s7\n s_mul_i32 s6, s6, {TB16}\n s_mul_i32 s7, s{sCT}, {12*256}\n s_add_u32 s6, s6, s7')
    a(f'v_lshrrev_b32 v40, 4, v2\n v_mul_u32_u24 v40, {TB16}, v40\n v_and_b32 v41, 15, v2\n v_lshl_add_u32 v40, v41, 4, v40\n v_lshl_add_u32 v40, v3, 8, v40\n v_add_u32 v{vHst}, s6, v40')
    a(f's_cmp_lt_u32 s{sCT}, 5\n s_cselect_b32 s{sScale}, {f32(QSCALE)}, 1.0\n s_mov_b32 s{sScale+1}, s{sScale}')
    a(f's_movk_i32 s{sC4096}, 4096\n s_movk_i32 s{sC8192}, 8192\n s_movk_i32 s{sC12288}, 12288')

def r1(a):
    a('WAITVM w0\n s_barrier')
    a.ext([rd_x(0)] + flat([rd_w(0, j, WF + 4*j) for j in range(4)]))
    pend = []
    for g in range(40):
        c, s = divmod(g, 4)
        buf = WF + 16 * (g & 1); nbuf = WF + 16 * ((g + 1) & 1)
        m = [mf32(ACC1 + 16*j, vr(buf + 4*j, 4), ar(4*g, 4), '0' if g == 0 else vr(ACC1 + 16*j, 16)) for j in range(4)]
        if g < 39: rds = [rd_x(g + 1)] + flat([rd_w(g + 1, j, nbuf + 4*j) for j in range(4)])
        else: rds = flat([rd_w1(0, 0, nbuf), rd_w1(0, 1, nbuf + 4), rd_w1(1, 0, nbuf + 8), rd_w1(1, 1, nbuf + 12)])
        a(m[0])
        if s == 3:
            a('WAITLG')
            a(f'WAITVM w{c+1}' if c < 9 else 'WAITVM u1')
            a('s_barrier')
            if c + 4 <= 9: pend += dma_x(c + 4) + dma_w(c + 4)
            if c == 5: pend += dma_w1(0) + dma_w1(1)
            if c >= 6: pend += dma_w1(2 * (c - 5)) + dma_w1(2 * (c - 5) + 1)
        nd = 4 if (c in (5, 6) and len(pend) > 6) else (6 if g == 39 else 2)
        d = pend[:nd]; pend = pend[nd:]
        a.ext(rds[0:3]); a(m[1]); a.ext(rds[3:6]); a.ext(flat(d[0:len(d)//3])); a(m[2]); a.ext(rds[6:]); a.ext(flat(d[len(d)//3:len(d)//2])); a(m[3]); a.ext(flat(d[len(d)//2:]))
    assert not pend

def silu_ops(src, tmp, dst, n):
    o = []
    for b in range(0, n, 4):
        t = tmp + (b & 4)
        o += [f'v_mul_f32 v{t+i}, {f32(-LOG2E)}, v{src+b+i}' for i in range(4)]
        o += [f'v_exp_f32 v{t+i}, v{t+i}' for i in range(4)]
        o += [f'v_add_f32 v{t+i}, 1.0, v{t+i}' for i in range(4)]
        o += [f'v_rcp_f32 v{t+i}, v{t+i}' for i in range(4)]
        o += [f'v_mul_f32 v{t+i}, v{src+b+i}, v{t+i}' for i in range(4)]
        o += [f'v_cvt_pk_bf16_f32 v{dst+(b//2)+i}, v{t+2*i}, v{t+2*i+1}' for i in range(2)]
    return o
def h_epi(j):
    o = []
    for e in range(2):
        d = TMP + 16 + 4 * ((2*j + e) & 3)
        o += silu_ops(ACC2 + 16*j + 8*e, TMP, d, 8)
        o += [f'buffer_store_dwordx4 {vr(d,4)}, v{vHst}, {S(rACT)}, 0 offen offset:{(4*j+2*e)*256}{SC} ; @hst']
    return o
def q_epi():
    o = []
    so = ['0', f's{sC4096}', f's{sC8192}', f's{sC12288}']
    for j in range(4):
        for e in range(2):
            b = ACC1 + 16*j + 8*e; d = TMP + 16 + 4 * ((2*j + e) & 3)
            o += [f'v_mul_f32 v{b+i}, s{sScale}, v{b+i}' for i in range(8)]
            o += [f'v_cvt_pk_bf16_f32 v{d+i}, v{b+2*i}, v{b+2*i+1}' for i in range(4)]
            o += [f'buffer_store_dwordx4 {vr(d,4)}, v{vQst}, {S(rQKV)}, {so[j]} offen offset:{2048*e}{SC} ; @qst']
    return o

def r2(a):
    items = [(g, j) for g in range(40) for j in range(2)] + [(g, 2) for g in range(40)]
    NB, D = 8, 4
    fb = lambda i: WF + 4 * (i % NB)
    fillA = q_epi(); fillB = h_epi(0) + h_epi(1)
    ka = kb = 0
    for i, (g, j) in enumerate(items):
        a(mf32(ACC2 + 16*j, vr(fb(i), 4), ar(4*g, 4), '0' if g == 0 else vr(ACC2 + 16*j, 16)))
        n = i + D
        if n < len(items):
            g2, j2 = items[n]
            if n < 80 and j2 == 0 and g2 % 8 == 0 and g2 > 0:
                a(f'WAITVM u{g2 // 4 + 1}\n s_barrier')
            a.ext(rd_w1(g2, j2, fb(n)))
        if 3 <= i < 80:
            a.ext(fillA[ka:ka + 3]); ka += 3
        if i >= 83:
            t = (len(fillB) * (i - 82) + 36) // 37
            a.ext(fillB[kb:t]); kb = max(kb, t)
    assert ka >= len(fillA) and kb >= len(fillB)
    a.ext(h_epi(2))

def gate_path(a):
    T = TMP
    a(f'v_lshlrev_b32 v40, 4, v0\n buffer_load_dwordx4 v[44:47], v40, {S(rGW)}, 0 offen')
    a.ext(flat(dma_w1(0) + dma_w1(1) + dma_w1(2) + dma_w1(4) + dma_w1(6) + dma_w1(8)))
    for i in range(4): a(f'v_lshlrev_b32 v{48+2*i}, 16, v{44+i}\n v_and_b32 v{49+2*i}, 0xffff0000, v{44+i}')
    a(f'v_lshlrev_b32 v40, 5, v0\n v_add_u32 v40, {GWTAB}, v40\n v_cmp_gt_u32 vcc, 80, v0\n s_and_saveexec_b64 s[6:7], vcc')
    a('ds_write_b128 v40, v[48:51]\n ds_write_b128 v40, v[52:55] offset:16\n s_mov_b64 exec, s[6:7]')
    a(f'v_lshlrev_b32 v41, 5, v3\n v_add_u32 v41, {GWTAB}, v41')
    for i in range(4): a(f'v_mov_b32 v{44+i}, 0x3f803f80')
    a('WAITLG\n s_barrier')
    for c in range(10):
        a(f'WAITVM x{c}')
        for s in range(4):
            g = 4*c + s; b = ACC1 + 16 + 12 * s
            a.ext([rd_x(g), rd_x(g, vr(b, 4)), f'ds_read_b128 {vr(b+4,4)}, v41 offset:{g*64}', f'ds_read_b128 {vr(b+8,4)}, v41 offset:{g*64+16}'])
        a('WAITLG')
        if c + 4 <= 9: a.ext(flat(dma_x(c + 4)))
        for s in range(4):
            g = 4*c + s; b = ACC1 + 16 + 12 * s
            for i in range(4): a(f'v_lshlrev_b32 v{T+2*i}, 16, v{b+i}\n v_and_b32 v{T+2*i+1}, 0xffff0000, v{b+i}')
            for i in range(4): a(f'v_pk_mul_f32 {vr(T+2*i,2)}, {vr(T+2*i,2)}, {vr(b+4+2*i,2)}')
            p = T + 8 + 4 * (s & 1)
            for i in range(4): a(f'v_cvt_pk_bf16_f32 v{p+i}, v{T+2*i}, v{T+2*i+1}')
            a(mf32(ACC1, 'v[44:47]', vr(p, 4), '0' if g == 0 else vr(ACC1, 16)))
    a('s_barrier')
    a.ext(flat(dma_w1(3) + dma_w1(5) + dma_w1(7) + dma_w1(9)))
    a(f'v_cvt_pk_bf16_f32 v40, v{ACC1}, v{ACC1}\n v_lshlrev_b32 v40, 16, v40\n v_mul_f32 v40, {f32(-LOG2E)}, v40\n v_exp_f32 v40, v40')
    a('v_add_f32 v40, 1.0, v40\n v_rcp_f32 v40, v40\n v_cvt_pk_bf16_f32 v40, v40, v40\n v_lshlrev_b32 v40, 16, v40')
    a(f's_lshl_b32 s6, s{sRB}, 9\n s_lshl_b32 s7, s{sW}, 7\n s_add_u32 s6, s6, s7\n v_lshlrev_b32 v41, 2, v2\n v_lshl_add_u32 v41, v3, 20, v41')
    a(f'buffer_store_dword v40, v41, {S(rG)}, s6 offen{SC}')
    a('WAITALL\n s_barrier')
    nbuf = WF
    a.ext(flat([rd_w1(0, 0, nbuf), rd_w1(0, 1, nbuf + 4), rd_w1(1, 0, nbuf + 8), rd_w1(1, 1, nbuf + 12)]))
    a('WAITALL')

def fin(lines): return pad_hazards(resolve(lines))

def k1():
    h = Asm(); prologue(h, 'K1_END'); stamp(h, 0); k1_setup(h)
    h('s_waitcnt lgkmcnt(0)')
    srd_in(h, rX, pX, 2048*1280); srd_in(h, rWQ, pWQ, 640*3840)
    h(f's_cmp_eq_u32 s{sCT}, 15\n s_cbranch_scc1 K1_GATE')
    rest = Asm()
    srd_in(rest, rW1, pW1, 640*3072); srd_ws(rest, rQKV, QKV_OFF, QKV_SZ); srd_ws(rest, rACT, ACT_OFF, ACT_SZ)
    k1_setup2(rest)
    m = Asm()
    for c in range(4): m.ext(flat(dma_x(c) + dma_w(c)))
    m.ext(rest.lines)
    stamp(m, 1)
    r1(m); stamp(m, 2)
    m.label('K1_R2'); r2(m); stamp(m, 3); m('s_waitcnt vmcnt(0)'); stamp(m, 4); stamp_store(m, 5, 0)
    m.label('K1_END'); m('s_endpgm')
    g = Asm(); g.label('K1_GATE')
    for c in range(4): g.ext(flat(dma_x(c)))
    g.ext(rest.lines); srd_in(g, rGW, pGW, 1280); srd_ws(g, rG, G_OFF, G_SZ)
    stamp(g, 1)
    gate_path(g); stamp(g, 2); g('s_waitcnt lgkmcnt(0)\n s_branch K1_R2')
    return fin(h.lines + m.lines) + fin(g.lines)

def repack_issue(a, ldsbase, vo):
    a(f's_lshl_b32 s8, s{sW}, 5\n s_add_u32 s{sRP}, s6, s8')
    a(f's_cmp_lt_u32 s{sRP}, 48\n s_cselect_b32 s{rW2}, s{pW2}, s{pWO}\n s_cselect_b32 s{rW2+1}, s{pW2+1}, s{pWO+1}\n s_mov_b32 s9, {640*1280}\n s_cselect_b32 s{rW2+2}, {1536*1280}, s9\n s_cselect_b32 s8, 0, 48')
    a(f's_mov_b32 s{rW2+3}, 0x20000\n s_sub_u32 s8, s{sRP}, s8\n s_mul_i32 s8, s8, {32*1280}\n s_mul_i32 s9, s7, 160\n s_add_u32 s8, s8, s9')
    a(f's_mul_i32 s9, s{sW}, 5120\n s_add_u32 s9, s9, {ldsbase}')
    for q in range(5):
        a(f'v_add_u32 v40, {64*q}, v1\n v_mul_u32_u24 v41, 6554, v40\n v_lshrrev_b32 v41, 16, v41\n v_mul_u32_u24 v42, 10, v41\n v_sub_u32 v40, v40, v42')
        a(f'v_mul_u32_u24 v41, 1280, v41\n v_lshl_add_u32 v40, v40, 4, v41\n s_add_u32 m0, s9, {1024*q}\n v_add_u32 v{vo}, s8, v40')
        a(f'buffer_load_dwordx4 v{vo}, {S(rW2)}, 0 offen lds ; @rp')
    a(f'v_lshrrev_b32 v40, 4, v1\n v_bfe_u32 v41, v1, 2, 2\n v_lshl_add_u32 v40, v40, 3, v41\n v_mul_u32_u24 v40, 160, v40\n v_add_u32 v40, s9, v40\n v_and_b32 v41, 3, v1')
    a(f'v_lshl_add_u32 v{vo}, v41, 4, v40\n v_lshl_add_u32 v{vo+1}, v41, 3, v40')
    a(f's_mul_i32 s8, s7, {WP_CS}\n s_mul_i32 s9, s{sRP}, 5120\n s_add_u32 s8, s8, s9\n s_cmp_lt_u32 s{sRP}, 68\n s_cselect_b32 s8, s8, 0x7ff00000')
    a(f'v_lshlrev_b32 v40, 4, v1\n v_add_u32 v{vo+2}, s8, v40\n v_add_u32 v{vo+3}, 4096, v{vo+2}')
def repack_finish(a, vo, t):
    a('WAITVM rp')
    for j in range(5):
        for i in range(2):
            if j < 4: a(f'ds_read_b64_tr_b16 {vr(t+4*j+2*i,2)}, v{vo} offset:{4*i*160 + 64*(j>>1) + 8*(j&1)}')
            else: a(f'ds_read_b64_tr_b16 {vr(t+4*j+2*i,2)}, v{vo+1} offset:{4*i*160 + 128}')
    for j in range(5):
        a(f'buffer_store_dwordx4 {vr(t+4*j,4)}, v{vo+2 if j < 4 else vo+3}, {S(rWP)}, 0 offen offset:{1024*(j&3)}{SC}')
sRP = 10

PB = [g * 6144 + p for g, p in enumerate((0, 64, 128, 256, 320, 448))]
KREG, VREG = 0, 31232
RPREG = VREG + PB[5] + 6144
sP = 5
vKV, vK1, vK2, vV, vOst, vG, vRP = 4, 8, 10, 11, 13, 15, 16
QF, MS, MD, SB, PF, OA, KF, VF = 20, 48, 64, 80, 112, 128, 160, 176
def k2():
    a = Asm(); prologue(a, 'K2_END'); stamp(a, 0)
    a(f's_and_b32 s6, s{sWG}, 7\n s_lshr_b32 s7, s{sWG}, 3\n s_and_b32 s{sRB}, s7, 15\n s_lshr_b32 s8, s7, 4\n s_lshl_b32 s{sP}, s6, 1\n s_add_u32 s{sP}, s{sP}, s8')
    a('s_waitcnt lgkmcnt(0)')
    srd_ws(a, rQKV, QKV_OFF, QKV_SZ)
    a(f's_and_b32 s8, s{sW}, 1\n s_mul_i32 s9, s8, 3\n s_lshl_b32 s11, s{sRB}, 1\n s_add_u32 s9, s9, s11\n s_sub_u32 s9, s9, 4')
    a(f's_lshr_b32 s11, s{sW}, 1\n s_mul_i32 s12, s11, {VREG}\n s_mul_i32 s8, s8, 3072\n s_add_u32 s12, s12, s8')
    a(f's_mul_i32 s11, s11, 80\n s_mul_i32 s8, s{sP}, 5\n s_add_u32 s11, s11, s8\n s_add_u32 s11, s11, 80\n s_lshl_b32 s11, s11, 10')
    a('v_lshlrev_b32 v40, 4, v1')
    for t in range(3):
        a(f's_add_u32 s8, s9, {t}\n s_mul_i32 s13, s8, {TB64}\n s_add_u32 s13, s13, s11\n s_cmp_lt_i32 s8, 0\n s_cselect_b32 s13, 0x7ff00000, s13\n v_add_u32 v{vKV+t}, s13, v40')
    for t in range(3):
        for g in range(5):
            a(f's_add_u32 m0, s12, {PB[g] + 1024*t}\n s_movk_i32 s8, {1024*g}\n buffer_load_dwordx4 v{vKV+t}, {S(rQKV)}, s8 offen{SC} lds ; @kv')
    srd_ws(a, rG, G_OFF, G_SZ); srd_ws(a, rACT, ACT_OFF, ACT_SZ); srd_ws(a, rWP, WP_OFF, WP_SZ)
    a(f's_lshl_b32 s8, s{sRB}, 1\n s_lshr_b32 s9, s{sW}, 1\n s_add_u32 s8, s8, s9\n s_mul_i32 s8, s8, {TB64}\n s_mul_i32 s9, s{sP}, 5120\n s_add_u32 s8, s8, s9')
    a(f's_and_b32 s9, s{sW}, 1\n s_lshl_b32 s9, s9, 9\n s_add_u32 s8, s8, s9')
    a(f'v_lshlrev_b32 v40, 4, v2\n v_lshl_add_u32 v41, v3, 10, v40\n v_lshl_add_u32 v42, v3, 30, v40')
    a(f'buffer_load_dwordx4 {vr(QF,4)}, v41, {S(rQKV)}, s8 offen{SC}\n buffer_load_dwordx4 {vr(QF+4,4)}, v41, {S(rQKV)}, s8 offen offset:3072{SC}')
    a(f'buffer_load_dwordx2 {vr(QF+8,2)}, v42, {S(rQKV)}, s8 offen offset:2048{SC}\n buffer_load_dwordx2 {vr(QF+12,2)}, v42, {S(rQKV)}, s8 offen offset:2056{SC}')
    a(f's_lshl_b32 s8, s{sRB}, 9\n s_lshl_b32 s9, s{sW}, 7\n s_add_u32 s8, s8, s9\n v_lshlrev_b32 v40, 2, v2\n buffer_load_dword v{vG}, v40, {S(rG)}, s8 offen{SC}')
    a(f'v_mov_b32 v{QF+10}, 0\n v_mov_b32 v{QF+11}, 0')
    a(f's_and_b32 s8, s{sWG}, 7\n s_lshr_b32 s9, s{sWG}, 3\n s_lshr_b32 s6, s8, 1\n s_lshl_b32 s6, s6, 3\n s_and_b32 s7, s9, 7\n s_add_u32 s6, s6, s7')
    a(f's_and_b32 s7, s8, 1\n s_lshl_b32 s7, s7, 2\n s_lshr_b32 s9, s9, 3\n s_add_u32 s7, s7, s9')
    repack_issue(a, RPREG, vRP)
    a(f's_lshl_b32 s8, s{sRB}, 7\n s_sub_u32 s8, 255, s8\n v_sub_u32 v40, s8, v0\n v_ashrrev_i32 v40, 31, v40\n v_and_b32 v44, 0x3f803f80, v40')
    a('v_mov_b32 v45, v44\n v_mov_b32 v46, v44\n v_mov_b32 v47, v44\n v_lshlrev_b32 v40, 4, v0')
    a(f'ds_write_b128 v40, v[44:47] offset:{VREG + PB[5]}')
    a('v_mov_b32 v36, 0x3f803f80\n v_mov_b32 v37, v36\n v_lshlrev_b32 v41, 3, v0')
    a(f'v_add_u32 v41, 4096, v41\n ds_write_b64 v41, v[36:37] offset:{VREG + PB[5]}')
    a('v_lshlrev_b32 v40, 2, v3\n v_sub_u32 v40, v2, v40')
    for r in range(16):
        k = (r & 3) + 8 * (r >> 2)
        a(f'v_subrev_u32 v41, {k}, v40\n v_ashrrev_i32 v41, 31, v41\n v_and_b32 v{MD+r}, {NEGBIG}, v41\n v_xor_b32 v{MS+r}, {NEGBIG}, v{MD+r}')
    a(f's_lshl_b32 s8, s{sW}, 9\n v_lshlrev_b32 v40, 4, v2\n v_add_u32 v40, s8, v40\n v_mul_u32_u24 v41, {PB[1]}, v3')
    a(f'v_add_u32 v{vK1}, v40, v41\n v_add_u32 v{vK1+1}, {PB[3]}, v{vK1}\n v_add_u32 v{vK2}, {PB[2]}, v40')
    assert PB[4] - PB[3] == PB[1]
    a(f'v_bfe_u32 v40, v1, 2, 2\n v_lshl_add_u32 v40, v3, 2, v40\n v_lshlrev_b32 v40, 4, v40\n s_add_u32 s8, s8, {VREG}\n v_add_u32 v40, s8, v40')
    a(f'v_and_b32 v41, 1, v1\n v_mul_u32_u24 v41, {PB[1]}, v41\n v_bfe_u32 v42, v1, 1, 1\n v_lshl_add_u32 v41, v42, 3, v41')
    a(f'v_and_b32 v42, 3, v1\n v_cmp_eq_u32 vcc, 0, v42\n v_mov_b32 v43, {PB[5]}\n v_mov_b32 v38, {PB[2]}\n v_mov_b32 v39, {PB[2]+8}')
    a('v_cndmask_b32 v38, v43, v38, vcc\n v_cndmask_b32 v39, v43, v39, vcc')
    a(f'v_and_b32 v42, 16, v1\n v_cmp_eq_u32 vcc, 0, v42\n v_add_u32 v43, {PB[3]}, v41')
    a(f'v_cndmask_b32 v38, v38, v41, vcc\n v_cndmask_b32 v39, v39, v43, vcc\n v_add_u32 v{vV}, v40, v38\n v_add_u32 v{vV+1}, v40, v39')
    a(f's_lshl_b32 s8, s{sRB}, 3\n s_lshl_b32 s9, s{sW}, 1\n s_add_u32 s8, s8, s9\n s_mul_i32 s8, s8, {TB16}\n s_mul_i32 s9, s{sP}, 1280\n s_add_u32 s8, s8, s9\n s_add_u32 s8, s8, {192*256}')
    a(f'v_lshrrev_b32 v40, 4, v2\n v_mul_u32_u24 v40, {TB16}, v40\n v_and_b32 v41, 15, v2\n v_lshl_add_u32 v40, v41, 4, v40\n v_add_u32 v40, s8, v40')
    a(f'v_lshl_add_u32 v{vOst}, v3, 8, v40\n v_lshl_add_u32 v{vOst+1}, v3, 30, v40')
    stamp(a, 1)
    a('WAITVM kv\n WAITLG\n s_barrier')
    repack_finish(a, vRP, 200)
    stamp(a, 2)
    attn_main(a)
    stamp(a, 3); a('s_waitcnt vmcnt(0)'); stamp(a, 4); stamp_store(a, 5, 1)
    a.label('K2_END'); a('s_endpgm')
    return fin(a.lines)

def attn_main(a):
    N = 18
    def rdK(i):
        n, hd = divmod(i, 2)
        o = [f'ds_read_b128 {vr(KF + 4*(i&1), 4)}, v{vK1+hd} offset:{512*n}']
        if hd == 0: o.append(f'ds_read_b128 {vr(KF + 8 + 4*(n&1), 4)}, v{vK2} offset:{512*n}')
        return o
    def rdV(i):
        n, hd = divmod(i, 2)
        return [f'ds_read_b64_tr_b16 {vr(VF + 8*(i&1) + 4*m + 2*k, 2)}, v{vV+hd} offset:{512*n + (16*m + 8*k)*16}' for m in range(2) for k in range(2)]
    def qk(i):
        n, hd = divmod(i, 2); s = SB + 16*(i&1)
        c = vr(MS, 16) if n == 0 else vr(MD, 16) if n == 8 else '0'
        return [mf32(s, vr(KF + 4*(i&1), 4), vr(QF + 4*hd, 4), c), mf32(s, vr(KF + 8 + 4*(n&1), 4), vr(QF + 8 + 2*hd, 4), vr(s, 16))]
    def pv(i):
        n, hd = divmod(i, 2); o = OA + 16*hd
        return [mf32(o, vr(VF + 8*(i&1) + 4*m, 4), vr(PF + 8*(i&1) + 4*m, 4), '0' if (n == 0 and m == 0) else vr(o, 16)) for m in range(2)]
    a.ext(rdK(0) + rdK(1)); a.ext(qk(0))
    for i in range(N + 1):
        s = SB + 16*(i&1); p = PF + 8*(i&1)
        mm = (qk(i+1) if i + 1 < N else [None, None]) + (pv(i-1) if i >= 1 else [None, None])
        rk = rdK(i+2) if i + 2 < N else []
        rv = rdV(i) if i < N else []
        ex = lambda q: [f'v_exp_f32 v{s+4*q+e}, v{s+4*q+e}' for e in range(4)] if i < N else []
        cv = lambda q: [f'v_cvt_pk_bf16_f32 v{p+2*q+e}, v{s+4*q+2*e}, v{s+4*q+2*e+1}' for e in range(2)] if i < N else []
        seq = [mm[0]] + ex(0) + rv[0:2] + [mm[1]] + ex(1) + cv(0) + rv[2:4] + [mm[2]] + ex(2) + cv(1) + rk + [mm[3]] + ex(3) + cv(2) + cv(3)
        a.ext([x for x in seq if x])
    T = SB
    for hd in range(2):
        o = OA + 16*hd
        a(f'v_rcp_f32 v{T+hd}, v{o+12}')
    for hd in range(2): a(f'v_mul_f32 v{T+hd}, v{vG}, v{T+hd}')
    for hd in range(2):
        o = OA + 16*hd
        for r in range(12): a(f'v_mul_f32 v{o+r}, v{T+hd}, v{o+r}')
        for r in range(4): a(f'v_cvt_pk_bf16_f32 v{T+4+4*hd+r}, v{o+2*r}, v{o+2*r+1}')
        for r in range(2): a(f'v_cvt_pk_bf16_f32 v{T+12+2*hd+r}, v{o+8+2*r}, v{o+9+2*r}')
        a(f'buffer_store_dwordx4 {vr(T+4+4*hd,4)}, v{vOst}, {S(rACT)}, 0 offen offset:{768*hd}{SC}')
    a(f'buffer_store_dwordx4 {vr(T+12,4)}, v{vOst+1}, {S(rACT)}, 0 offen offset:512{SC}')

sRT, sCS = 4, 5
vA, vWp, vGt, vRw, vRr, vOo = 4, 8, 10, 14, 17, 18
AC3, AB = 32, 112
def k3():
    a = Asm(); prologue(a, 'K3_END'); stamp(a, 0)
    a(f's_and_b32 s8, s{sWG}, 7\n s_lshr_b32 s9, s{sWG}, 3\n s_lshr_b32 s6, s8, 1\n s_lshl_b32 s6, s6, 3\n s_and_b32 s7, s9, 7\n s_add_u32 s{sRT}, s6, s7')
    a(f's_and_b32 s7, s8, 1\n s_lshl_b32 s7, s7, 2\n s_lshr_b32 s9, s9, 3\n s_add_u32 s{sCS}, s7, s9')
    a('v_lshlrev_b32 v30, 4, v1')
    for u in range(4):
        a(f's_add_u32 s6, s{sW}, {u}\n s_and_b32 s6, s6, 3\n s_lshl_b32 s7, s{sRT}, 2\n s_add_u32 s7, s7, s6\n s_mul_i32 s{11+u}, s7, 64\n s_mul_i32 s7, s7, {TB16}\n v_add_u32 v{vA+u}, s7, v30')
        if u: a(f's_mul_i32 s6, s6, {15*1024}\n s_add_u32 s6, s6, {(u-1)*5120}\n v_add_u32 v{vRw+u-1}, s6, v30')
        else: a(f's_mul_i32 s6, s6, {15*1024}\n v_add_u32 v{vRr}, s6, v30')
    a(f's_mul_i32 s6, s{sCS}, {WP_CS}\n v_add_u32 v{vWp}, s6, v30\n v_add_u32 v{vWp+1}, 4096, v{vWp}')
    a('s_waitcnt lgkmcnt(0)')
    srd_ws(a, rACT, ACT_OFF, ACT_SZ); srd_ws(a, rWP, WP_OFF, WP_SZ)
    a(f's_mul_i32 s6, s{sW}, {12*1024}\n s_mul_i32 s7, s{sW}, {12*5120}\n s_mul_i32 s8, s{sW}, {5*1024}\n s_mul_i32 s9, s{sW}, {5*5120}')
    NA, NW = 9, 12
    def loads(i):
        ba, bw, k = (6, 7, i) if i < 12 else (8, 9, i - 12 + 48)
        o = [f's_add_u32 s10, s{bw}, {k*5120}', f's_add_u32 s15, s{ba}, {k*1024}']
        w = [f'buffer_load_dwordx4 {ar(20*(i%NW)+4*j,4)}, v{vWp+(j>>2)}, {S(rWP)}, s10 offen offset:{1024*(j&3)}{SC}' for j in range(5)]
        x = [f'buffer_load_dwordx4 {vr(AB+16*(i%NA)+4*u,4)}, v{vA+u}, {S(rACT)}, s15 offen{SC}' for u in range(4)]
        return [o + [x[0]], w[0], x[1], w[1], x[2], w[2], x[3], w[3], w[4]]
    D = 6
    for i in range(D): a.ext(flat(loads(i)))
    srd_ws(a, rG, G_OFF, G_SZ); srd_in(a, rOUT, pOUT, 2048*1280)
    a('v_and_b32 v31, 15, v1\n v_lshlrev_b32 v29, 2, v31')
    for u in range(4): a(f'buffer_load_dword v{vGt+u}, v29, {S(rG)}, s{11+u} offen{SC}')
    a(f's_mul_i32 s10, s11, 320\n s_mul_i32 s15, s{sCS}, 160\n s_add_u32 s10, s10, s15')
    a(f'v_mul_u32_u24 v31, 1280, v31\n v_add_u32 v31, s10, v31\n v_lshrrev_b32 v29, 4, v1\n v_lshl_add_u32 v{vOo}, v29, 4, v31\n v_lshl_add_u32 v{vOo+1}, v29, 3, v31')
    stamp(a, 1)
    acc = lambda u, j: AC3 + 20*u + 4*j
    for i in range(17):
        if i == 12:
            for u in range(4): a(f'v_sub_f32 v{vGt+u}, 1.0, v{vGt+u}')
            for u in range(4): a(f'v_cvt_pk_bf16_f32 v{vGt+u}, v{vGt+u}, v{vGt+u}')
            for u in range(4): a(f'v_lshlrev_b32 v{vGt+u}, 16, v{vGt+u}')
            for u in range(4):
                for r in range(20): a(f'v_mul_f32 v{acc(u,0)+r}, v{vGt+u}, v{acc(u,0)+r}')
        m = [f'v_mfma_f32_16x16x32_bf16 {vr(acc(u,j),4)}, {ar(20*(i%NW)+4*j,4)}, {vr(AB+16*(i%NA)+4*u,4)}, {"0" if i == 0 else vr(acc(u,j),4)}' for j in range(5) for u in range(4)]
        a.ext(interleave(m, loads(i + D) if i + D < 17 else []))
    stamp(a, 2)
    for u in range(1, 4):
        for j in range(5): a(f'ds_write_b128 v{vRw+u-1}, {vr(acc(u,j),4)} offset:{1024*j}')
    a('WAITLG\n s_barrier')
    for j in range(5):
        for u in range(1, 4): a(f'ds_read_b128 {vr(AB+20*(u-1)+4*j,4)}, v{vRr} offset:{(u-1)*5120 + 1024*j}')
    for j in range(5):
        for u in range(1, 4):
            for r in range(4): a(f'v_add_f32 v{acc(0,j)+r}, v{acc(0,j)+r}, v{AB+20*(u-1)+4*j+r}')
        for r in range(2): a(f'v_cvt_pk_bf16_f32 v{20+2*j+r}, v{acc(0,j)+2*r}, v{acc(0,j)+2*r+1}')
        if j in (1, 3): a(f'buffer_store_dwordx4 {vr(20+2*(j-1),4)}, v{vOo}, {S(rOUT)}, 0 offen offset:{32*(j-1)}')
        if j == 4: a(f'buffer_store_dwordx2 {vr(28,2)}, v{vOo+1}, {S(rOUT)}, 0 offen offset:128')
    stamp(a, 3); a('s_waitcnt vmcnt(0)'); stamp(a, 4); stamp_store(a, 5, 2)
    a.label('K3_END'); a('s_endpgm')
    return fin(a.lines)

def kd(name, nv=512, acc=256):
    return f'''.amdhsa_kernel {name}
  .amdhsa_next_free_vgpr {nv}
  .amdhsa_next_free_sgpr 102
  .amdhsa_accum_offset {acc}
  .amdhsa_group_segment_fixed_size 0
  .amdhsa_kernarg_size 80
  .amdhsa_user_sgpr_count 2
  .amdhsa_user_sgpr_kernarg_segment_ptr 1
  .amdhsa_system_sgpr_workgroup_id_x 1
.end_amdhsa_kernel
'''
def build(kernels):
    hdr = ''.join(l for l in open(f'cdna_kernels/{NAME}.s.ref') if l.startswith(';') and '@launch' not in l)
    for n, _, lds in kernels: hdr += f'; @launch kernel={n} grid=(256,1,1) block=(256,1,1) lds={lds}\n'
    s = hdr + '.amdgcn_target "amdgcn-amd-amdhsa--gfx950"\n.text\n'
    for n, lines, _ in kernels:
        pr = check(lines, n)
        for p in pr: print('CHECK', p, file=sys.stderr)
        b = Asm(); b.lines = lines
        s += f'.globl {n}\n.p2align 8\n.type {n},@function\n{n}:\n' + b.text()
    s += '.section .rodata,"a"\n'
    for n, _, _ in kernels: s += '.p2align 6\n' + kd(n)
    return s

if __name__ == '__main__':
    STAMPS = '--stamps' in sys.argv
    out = [x for x in sys.argv[1:] if not x.startswith('--')][0]
    open(out, 'w').write(build([('gm_gemm1_kernel', k1(), 163840), ('gm_attn_kernel', k2(), 90112), ('gm_gemm2_kernel', k3(), 61440)]))
```

```python
import sys
import kern3 as K
from asmlib import *
def empty(lbl):
    return ['s_endpgm']
def chase(ptr_off, stride, n, size, base_add=0):
    a = Asm()
    a('s_cmp_ge_u32 s2, 1\n s_cbranch_scc1 PR_END')
    a(f's_load_dwordx2 s[4:5], s[0:1], {ptr_off}\n s_waitcnt lgkmcnt(0)\n s_add_u32 s8, s4, {base_add}\n s_addc_u32 s9, s5, 0\n s_mov_b32 s10, {size}\n s_mov_b32 s11, 0x20000')
    a(f'v_mov_b32 v1, 0\n s_mov_b32 s12, 0')
    a.label('PR_L')
    a(f'buffer_load_dword v2, v1, s[8:11], 0 offen sc1\n s_waitcnt vmcnt(0)\n v_add_u32 v1, {stride}, v1\n s_add_u32 s12, s12, 1\n s_cmp_lt_u32 s12, {n}\n s_cbranch_scc1 PR_L')
    a.label('PR_END'); a('s_endpgm')
    return a.lines
base = [('gm_gemm1_kernel', K.k1(), 163840), ('gm_attn_kernel', K.k2(), 90112), ('gm_gemm2_kernel', K.k3(), 61440)]
open('p_a.s', 'w').write(K.build(base))
open('p_b.s', 'w').write(K.build(base + [('e_kernel', empty(0), 0)]))
open('p_c.s', 'w').write(K.build([('e_kernel', empty(0), 0)] + base))
open('p_d.s', 'w').write(K.build([('e_kernel', chase(24, 24576 + 128, 100, 2621440), 0)] + base))
open('p_e.s', 'w').write(K.build([('e_kernel', chase(24, 0, 100, 2621440), 0)] + base))
open('p_f.s', 'w').write(K.build([('e_kernel', chase(72, 24576 + 128, 100, 2621440, 64 << 20), 0)] + base))
```

```python
import sys
import kern3 as K
from asmlib import *
def alu(n, wgs):
    a = Asm()
    a(f's_cmp_ge_u32 s2, {wgs}\n s_cbranch_scc1 PR_END\n s_mov_b32 s12, 0')
    a.label('PR_L')
    for i in range(16): a('v_add3_u32 v1, v0, v0, v0')
    a(f's_add_u32 s12, s12, 1\n s_cmp_lt_u32 s12, {n}\n s_cbranch_scc1 PR_L')
    a.label('PR_END'); a('s_endpgm')
    return a.lines
def touch(offs):
    a = Asm()
    a(f's_cmp_ge_u32 s2, 256\n s_cbranch_scc1 PR_END\n s_lshl_b32 s3, s2, 8\n v_add_u32 v1, s3, v0\n v_lshlrev_b32 v1, 6, v1')
    for off, size in offs:
        a(f's_load_dwordx2 s[8:9], s[0:1], {off}\n s_mov_b32 s10, {size}\n s_mov_b32 s11, 0x20000\n s_waitcnt lgkmcnt(0)\n buffer_load_dword v2, v1, s[8:11], 0 offen')
    a('s_waitcnt vmcnt(0)')
    a.label('PR_END'); a('s_endpgm')
    return a.lines
def straight(n):
    return ['v_add3_u32 v1, v0, v0, v0'] * n + ['s_endpgm']
base = [('gm_gemm1_kernel', K.k1(), 163840), ('gm_attn_kernel', K.k2(), 90112), ('gm_gemm2_kernel', K.k3(), 61440)]
def rep(s, names):
    L = s.split('\n'); ll = [l for l in L if l.startswith('; @launch')]
    i = L.index(ll[-1])
    add = [l for n in names for l in ll if n in l]
    return '\n'.join(L[:i+1] + add + L[i+1:])
b = K.build(base)
open('q_a.s', 'w').write(rep(b, ['gemm1', 'attn', 'gemm2']))
open('q_b.s', 'w').write(rep(b, ['gemm2']))
open('q_c.s', 'w').write(K.build([('e_kernel', alu(500, 256), 0)] + base))
open('q_d.s', 'w').write(K.build([('e_kernel', touch([(0, 2621440), (8, 2457600), (16, 819200), (32, 1966080), (40, 1966080)]), 0)] + base))
open('q_e.s', 'w').write(K.build([('e_kernel', straight(4096), 0)] + base))
open('q_f.s', 'w').write(K.build([('e_kernel', alu(256, 256), 0)] + base))
```

```python
import sys
import kern3 as K
from asmlib import *
SLOT = 0x1700000
def mark(i, name):
    a = Asm()
    a(f's_memrealtime s[12:13]\n s_cmp_ge_u32 s2, 1\n s_cbranch_scc1 {name}_END\n s_load_dwordx2 s[4:5], s[0:1], 72\n s_waitcnt lgkmcnt(0)')
    a(f's_add_u32 s8, s4, {SLOT}\n s_addc_u32 s9, s5, 0\n s_mov_b32 s10, 4096\n s_mov_b32 s11, 0x20000\n v_mov_b32 v1, 0\n v_mov_b32 v2, s12\n buffer_store_dword v2, v1, s[8:11], 0 offen offset:{4*i}')
    a.label(f'{name}_END'); a('s_endpgm'); return a.lines
def spin(base_ticks, plus=None, mult=1):
    a = Asm()
    a(f's_cmp_ge_u32 s2, 1\n s_cbranch_scc1 SP_END\n s_load_dwordx2 s[4:5], s[0:1], 72\n s_waitcnt lgkmcnt(0)')
    a(f's_add_u32 s8, s4, {SLOT}\n s_addc_u32 s9, s5, 0\n s_mov_b32 s10, 4096\n s_mov_b32 s11, 0x20000\n v_mov_b32 v1, 0\n buffer_load_dwordx4 v[4:7], v1, s[8:11], 0 offen sc1\n s_waitcnt vmcnt(0)')
    a('v_readfirstlane_b32 s20, v4\n v_readfirstlane_b32 s21, v5\n v_readfirstlane_b32 s22, v6\n v_readfirstlane_b32 s23, v7')
    a(f's_mov_b32 s14, {base_ticks}')
    if plus: a(f's_sub_u32 s15, s{20+plus[1]}, s{20+plus[0]}\n s_min_u32 s15, s15, 4000\n s_mul_i32 s15, s15, {mult}\n s_add_u32 s14, s14, s15')
    a('s_mov_b32 s16, 0')
    a.label('SP_L')
    a('s_memrealtime s[12:13]\n s_waitcnt lgkmcnt(0)\n s_sub_u32 s12, s12, s20\n s_cmp_ge_u32 s12, s14\n s_cbranch_scc1 SP_END\n s_add_u32 s16, s16, 1\n s_cmp_lt_u32 s16, 20000\n s_cbranch_scc1 SP_L')
    a.label('SP_END'); a('s_endpgm'); return a.lines
k1, k2, k3 = ('gm_gemm1_kernel', K.k1(), 163840), ('gm_attn_kernel', K.k2(), 90112), ('gm_gemm2_kernel', K.k3(), 61440)
m = lambda i: (f'm{i}_kernel', mark(i, f'M{i}'), 0)
seq = [m(0), k1, m(1), k2, m(2), k3, m(3)]
open('s_a.s', 'w').write(K.build(seq + [('sp_kernel', spin(7000), 0)]))
open('s_b.s', 'w').write(K.build(seq + [('sp_kernel', spin(7000, (0, 1)), 0)]))
open('s_c.s', 'w').write(K.build(seq + [('sp_kernel', spin(7000, (1, 2)), 0)]))
open('s_d.s', 'w').write(K.build(seq + [('sp_kernel', spin(7000, (2, 3)), 0)]))
open('s_e.s', 'w').write(K.build([m(0), m(1), k1, k2, k3, ('sp_kernel', spin(7000, (0, 1)), 0)]))
open('s_f.s', 'w').write(K.build(seq))
```
